```python
import torch

def _softmax(x, axis=-1):
    return torch.softmax(x, dim=axis)
def _gelu(x):
    return torch.nn.functional.gelu(x, approximate="tanh")
def _silu(x):
    return torch.nn.functional.silu(x)
def _sigmoid(x):
    return torch.sigmoid(x)
def _layernorm(x, axis=-1, eps=1e-5):
    m = x.mean(dim=axis, keepdim=True)
    v = x.var(dim=axis, keepdim=True, unbiased=False)
    return (x - m) / torch.sqrt(v + eps)
def _scatter_add(tgt, idx, src, axis=0):
    return tgt.clone().index_add_(axis, idx, src)
def _segment_sum(src, seg, n):
    out = torch.zeros((n,) + src.shape[1:], dtype=src.dtype)
    return out.index_add_(0, seg, src)
def _pad(x, pw):
    flat = tuple(v for pair in reversed(pw) for v in pair)
    return torch.nn.functional.pad(x, flat)

kernel_name = 'gated_mix__spectral_gfnet__linear_attn_block__prompt'

def setup_inputs():

    _w = (lambda a: (lambda t: t.to(torch.bfloat16) if t.is_floating_point() else t)(torch.as_tensor(a)))
    def _A_setup():
        B, S, D = 1, 2048, 512
        Df = D // 2 + 1
        return {
            "x": _w((lambda *s: torch.randn(*s, dtype=torch.bfloat16) * 0.05)(B, S, D)),
            "w_r": _w((lambda *s: torch.randn(*s, dtype=torch.bfloat16) * 1.6)(S, Df) * 0.02),
            "w_i": _w((lambda *s: torch.randn(*s, dtype=torch.bfloat16) * 1.6)(S, Df) * 0.02),
        }
    _A_in = _A_setup()

    def _B_setup():
        B, S, D = 1, 2048, 512
        return {
            "x": _w((lambda *s: torch.randn(*s, dtype=torch.bfloat16) * 0.05)(B, S, D)),
            "wqkv": _w((lambda *s: torch.randn(*s, dtype=torch.bfloat16) * 0.4)(D, 3 * D)),
            "wo": _w((lambda *s: torch.randn(*s, dtype=torch.bfloat16) * 0.05)(D, D)),
        }
    _B_in = _B_setup()

    return {
        "A_x": _A_in["x"],
        "A_w_r": _A_in["w_r"],
        "A_w_i": _A_in["w_i"],
        "B_x": _B_in["x"],
        "B_wqkv": _B_in["wqkv"],
        "B_wo": _B_in["wo"],
        "gate_w": _w((lambda *s: torch.randn(*s, dtype=torch.bfloat16) * 0.05)(512) * 16.0),
    }

def reference(A_x, A_w_r, A_w_i, B_x, B_wqkv, B_wo, gate_w):
    def _A_ref(x, w_r, w_i):
        B, S, D = x.shape
        X = (lambda x, axes=(-2,-1): torch.fft.rfft2(x.float(), dim=axes))(x, axes=(-2, -1))
        W = w_r + 1j * w_i
        X = X * W
        y = (lambda x, s, axes=(-2,-1): torch.fft.irfft2(x, s=s, dim=axes).to(torch.bfloat16))(X, (S, D), axes=(-2, -1))
        return y

    def _B_ref(x, wqkv, wo):
        B, S, D = x.shape
        H = 32; Dh = D // H
        qkv = (lambda x, *d: x.permute(*d))((x @ wqkv).reshape(B, S, 3, H, Dh), 2, 0, 3, 1, 4)
        q, k, v = qkv[0], qkv[1], qkv[2]
        phi = lambda t: torch.where(t > 0, t + 1, torch.exp(t)) + 1e-6
        pq, pk = phi(q), phi(k)
        kv = torch.einsum("bhsd,bhse->bhde", pk, v)
        z = torch.einsum("bhsd->bhd", pk)
        num = torch.einsum("bhqd,bhde->bhqe", pq, kv)
        den = torch.einsum("bhqd,bhd->bhq", pq, z)[..., None] + 1e-6
        o = num / den
        return (lambda x, *d: x.permute(*d))(o, 0, 2, 1, 3).reshape(B, S, D) @ wo

    x = A_x
    g = _sigmoid((x * gate_w).sum(-1, keepdims=True))
    a = _A_ref(x, A_w_r, A_w_i)
    b = _B_ref(x, B_wqkv, B_wo)
    return g * a + (1 - g) * b
```

```python
import re
TRANS = ("v_exp_f32","v_log_f32","v_rcp_f32","v_rsq_f32","v_sqrt_f32","v_sin_f32","v_cos_f32")
def regs_of(tok):
    tok = tok.strip()
    tok = tok.lstrip('-')
    if tok.startswith('abs(') or tok.startswith('|'): tok = tok.strip('|'); tok = tok.replace('abs(','').rstrip(')')
    m = re.fullmatch(r'([vsa])(\d+)', tok)
    if m: return {(m.group(1), int(m.group(2)))}
    m = re.fullmatch(r'([vsa])\[(\d+):(\d+)\]', tok)
    if m: return {(m.group(1), i) for i in range(int(m.group(2)), int(m.group(3))+1)}
    if tok in ('vcc','vcc_lo','vcc_hi'): return {('s','vcc')}
    if tok in ('exec','exec_lo','exec_hi'): return {('x','exec')}
    if tok == 'm0': return {('x','m0')}
    return set()
def split_ops(s):
    out=[]; depth=0; cur=''
    for ch in s:
        if ch in '[(': depth+=1
        if ch in '])': depth-=1
        if ch==',' and depth==0: out.append(cur.strip()); cur=''
        else: cur+=ch
    if cur.strip(): out.append(cur.strip())
    return out
class Ins:
    def __init__(s, text):
        s.text = text
        t = text.split(';')[0].strip()
        p = t.split(None,1)
        s.mn = p[0]; rest = p[1] if len(p)>1 else ''
        ops = split_ops(rest)
        mods = ''
        if ops:
            q = ops[-1].split(None,1)
            ops[-1] = q[0]; mods = q[1] if len(q)>1 else ''
        s.ops = ops; s.mods = mods
        mn = s.mn
        R = [regs_of(o) for o in ops]
        U = lambda l: set().union(*l) if l else set()
        s.w=set(); s.r=set(); s.cls='other'; s.passes=0; s.C=set(); s.AB=set(); s.sdata=set()
        s.dpp = ('_dpp' in mn) or ('row_' in mods) or ('quad_perm' in mods)
        if mn.startswith('v_mfma'):
            s.cls='mfma'; s.w=R[0]; s.AB=R[1]|R[2]; s.C=R[3]; s.r=s.AB|s.C
            s.passes = 8 if '32x32' in mn else 4
        elif mn.startswith('v_'):
            s.cls='valu'
            if mn.startswith(('v_swap','v_permlane16_swap','v_permlane32_swap')):
                s.w=R[0]|R[1]; s.r=R[0]|R[1]
            elif mn.startswith(('v_add_co','v_sub_co','v_addc_co','v_subb_co','v_subrev_co')):
                s.w=R[0]|R[1]; s.r=U(R[2:])
            else:
                s.w=R[0]; s.r=U(R[1:])
                if mn.startswith(('v_fmac','v_dot2c','v_mac','v_pk_fmac','v_writelane')) or s.dpp: s.r|=R[0]
        elif mn.startswith('ds_'):
            s.cls='ds'
            if mn.startswith(('ds_read','ds_bpermute','ds_permute','ds_swizzle')) or '_rtn' in mn:
                s.w=R[0]; s.r=U(R[1:])
                if 'd16' in mn: s.r|=R[0]
            else: s.r=U(R)
        elif mn.startswith(('global_','buffer_')):
            s.cls='vmem'
            islds = '_lds_' in mn or re.search(r'\blds\b', mods)
            if islds: s.r=U(R)|{('x','m0')}; s.islds=True
            elif 'load' in mn:
                s.w=R[0]; s.r=U(R[1:])
                if 'd16' in mn: s.r|=R[0]
            elif 'atomic' in mn and 'sc0' in mods and mn.startswith('global'):
                s.w=R[0]; s.r=U(R[1:])
            else:
                s.r=U(R)
                if 'x3' in mn or 'x4' in mn:
                    s.sdata = R[1] if mn.startswith('global') else R[0]
        elif mn.startswith(('s_load','s_memtime','s_memrealtime','s_buffer_load')):
            s.cls='smem'; s.w=R[0]; s.r=U(R[1:])
        elif mn.startswith('s_'):
            s.cls='salu'
            if mn.startswith(('s_cmp','s_cbranch','s_branch','s_waitcnt','s_barrier','s_nop','s_sleep','s_endpgm','s_setprio','s_bitcmp')):
                s.r=U(R)
            else:
                s.w=R[0]; s.r=U(R[1:])
                if 'saveexec' in mn: s.w|={('x','exec')}
    def states(s):
        if s.mn=='s_nop': return int(s.ops[0],0)+1
        return 1
def V(x): return {r for r in x if r[0] in 'va'}
def S(x): return {r for r in x if r[0]=='s'}
def need(p, c):
    n=0
    if p.cls=='valu':
        pv=V(p.w); ps=S(p.w)
        if c.cls=='mfma' and pv & c.r: n=max(n,2)
        if c.cls=='valu':
            if p.mn.startswith(TRANS) and not c.mn.startswith(TRANS) and pv & c.r: n=max(n,1)
            if c.mn.startswith(('v_readfirstlane','v_readlane')) and pv & c.r: n=max(n,1)
            if c.mn.startswith('v_permlane') and pv & c.r: n=max(n,2)
            if c.dpp and pv & c.r: n=max(n,2)
            if ps & c.r:
                n=max(n, 4 if c.mn.startswith(('v_readlane','v_writelane')) else 2)
            if ('op_sel' in p.mods and not p.mn.startswith('v_pk')) and pv & (c.r|c.w): n=max(n,1)
        if c.cls=='vmem' and ps & c.r: n=max(n,5)
        if c.cls in('salu','smem') and ps & c.r: n=max(n,1)
    if p.cls=='mfma':
        d=p.w; big = p.passes==8
        if c.cls=='mfma':
            if d & c.AB: n=max(n, 12 if big else 8)
            if d & c.C:
                if not (d==c.C and p.passes==c.passes): n=max(n, 10 if big else 6)
            elif d & c.w: n=max(n, 10 if big else 6)
        elif c.cls in('valu','vmem','ds'):
            if d & (c.r|c.w): n=max(n, 12 if big else 8)
        if c.cls=='valu' and p.C & c.w: n=max(n, 7 if big else 3)
    if p.cls=='salu' and ('x','m0') in p.w and c.cls=='vmem' and ('x','m0') in c.r: n=max(n,1)
    if p.cls=='vmem' and p.sdata and (p.sdata & c.w):
        n=max(n, 2 if c.cls in('valu','mfma') else 1)
    return n
def fix_hazards(lines):
    out=[]; win=[]
    saved={}
    for ln in lines:
        t = ln.split(';')[0].strip()
        if not t or t.startswith('.'):
            out.append(ln); continue
        if t.endswith(':'):
            lab=t[:-1]
            for w in saved.pop(lab,[]): win = win + w
            out.append(ln); continue
        c=Ins(ln)
        k=0
        for (p,age) in win:
            k=max(k, need(p,c)-age)
        while k>0:
            q=min(k,16); out.append(f"    s_nop {q-1}"); win=[(p,a+q) for p,a in win]; k-=q
        out.append(ln)
        st=c.states()
        win=[(p,a+st) for p,a in win if a+st<20]
        win.append((c,0))
        if c.mn.startswith(('s_cbranch','s_branch')):
            saved.setdefault(c.ops[0],[]).append(list(win))
        if c.mn in('s_branch','s_endpgm'): win=[]
    return out

class Pool:
    def __init__(s, pre, lo, hi):
        s.pre=pre; s.free=set(range(lo,hi)); s.hw=lo
    def alloc(s, n=1, align=None):
        if align is None: align = 1 if n==1 else (2 if s.pre!='s' or n==2 else 4)
        for b in sorted(s.free):
            if b%align==0 and all((b+i) in s.free for i in range(n)):
                for i in range(n): s.free.discard(b+i)
                s.hw=max(s.hw,b+n)
                return Reg(s.pre,b,n)
        raise RuntimeError(f"out of {s.pre} regs (n={n})")
    def release(s, *rs):
        for r in rs:
            for i in range(r.n):
                assert (r.b+i) not in s.free, f"double free {r}"
                s.free.add(r.b+i)
class Reg:
    def __init__(s,pre,b,n): s.pre=pre; s.b=b; s.n=n
    def __str__(s): return f"{s.pre}{s.b}" if s.n==1 else f"{s.pre}[{s.b}:{s.b+s.n-1}]"
    __repr__=__str__
    def __format__(s,f): return str(s)
    def __getitem__(s,i):
        if isinstance(i,slice):
            a=i.start or 0; b=i.stop if i.stop is not None else s.n
            assert 0<=a<b<=s.n
            return Reg(s.pre,s.b+a,b-a)
        assert 0<=i<s.n, (s,i)
        return Reg(s.pre,s.b+i,1)
class K:
    def __init__(s, name, vmax=256):
        s.name=name; s.L=[]; s.v=Pool('v',1,vmax); s.s=Pool('s',24,100); s.nl=0
    def e(s, t):
        for ln in t.strip('\n').split('\n'):
            ln=ln.strip()
            if ln: s.L.append(ln if ln.endswith(':') else '    '+ln)
    def lab(s, stem):
        s.nl+=1; return f"L{stem}_{s.name}_{s.nl}"
    def text(s):
        body = fix_hazards(s.L)
        vg = max(s.v.hw, 8)
        return (f".globl {s.name}\n.p2align 8\n.type {s.name},@function\n{s.name}:\n" + "\n".join(body) + "\n" +
f""".section .rodata,"a"
.p2align 6
.amdhsa_kernel {s.name}
  .amdhsa_next_free_vgpr {vg}
  .amdhsa_next_free_sgpr 102
  .amdhsa_accum_offset {(vg+3)//4*4}
  .amdhsa_group_segment_fixed_size 0
  .amdhsa_kernarg_size 80
  .amdhsa_user_sgpr_count 2
  .amdhsa_user_sgpr_kernarg_segment_ptr 1
  .amdhsa_system_sgpr_workgroup_id_x 1
.end_amdhsa_kernel
.text
""")
import struct
def f2u(x): return struct.unpack('<I', struct.pack('<f', x))[0]
def fl(x): return f"0x{f2u(x):08x}"
```

```python
import sys
from fw import *
WS_X1, WS_X2, WS_X3, WS_PQ, WS_KV, WS_G = 0x000000, 0x200000, 0x400000, 0x600000, 0x800000, 0x810000
LOG2E = 1.4426950408889634
X, WR, WI, WQKV, WO, GATE, OUT, DBG, WS = "s[4:5]","s[6:7]","s[8:9]","s[12:13]","s[14:15]","s[16:17]","s[18:19]","s[20:21]","s[22:23]"
SC = "sc1"

class Ctx: pass

def prologue(k):
    c = Ctx(); k.c = c
    c.end = k.lab("end")
    c.wv = k.s.alloc(); c.rt = k.s.alloc(); c.ct = k.s.alloc(); c.slo = k.s.alloc(); c.lam = k.s.alloc(); c.gam = k.s.alloc()
    c.lane = k.v.alloc(); c.l15 = k.v.alloc(); c.g = k.v.alloc()
    t = k.s.alloc()
    k.e(f"""
    s_cmp_ge_u32 s2, 256
    s_cbranch_scc1 {c.end}
    s_load_dwordx16 s[4:19], s[0:1], 0
    s_load_dwordx4 s[20:23], s[0:1], 64
    v_lshrrev_b32 {c.g}, 6, v0
    v_and_b32 {c.lane}, 63, v0
    v_readfirstlane_b32 {c.wv}, {c.g}
    v_and_b32 {c.l15}, 15, v0
    v_bfe_u32 {c.g}, v0, 4, 2
    s_and_b32 {c.lam}, s2, 7
    s_lshr_b32 {c.gam}, s2, 3
    s_lshr_b32 {c.rt}, {c.lam}, 1
    s_lshl_b32 {c.rt}, {c.rt}, 3
    s_lshr_b32 {t}, {c.gam}, 2
    s_add_u32 {c.rt}, {c.rt}, {t}
    s_and_b32 {c.ct}, {c.lam}, 1
    s_lshl_b32 {c.ct}, {c.ct}, 2
    s_and_b32 {t}, {c.gam}, 3
    s_add_u32 {c.ct}, {c.ct}, {t}
    s_lshl_b32 {c.slo}, {c.rt}, 3
    s_add_u32 {c.slo}, {c.slo}, {c.ct}
    """)
    k.s.release(t)
def epilogue(k):
    k.e(f"{k.c.end}:\ns_endpgm")
def wsbase(k, off):
    b = k.s.alloc(2)
    k.e(f"s_add_u32 {b[0]}, s22, {off}\ns_addc_u32 {b[1]}, s23, 0")
    return b
def base_consts(k):
    c = k.c
    c.fl15 = k.v.alloc(); c.fg4 = k.v.alloc(4); c.P = k.v.alloc(4)
    k.e(f"""
    v_cvt_f32_u32 {c.fl15}, {c.l15}
    v_lshlrev_b32 {c.fg4[0]}, 2, {c.g}
    v_cvt_f32_u32 {c.fg4[0]}, {c.fg4[0]}
    v_add_f32 {c.fg4[1]}, 1.0, {c.fg4[0]}
    v_add_f32 {c.fg4[2]}, 2.0, {c.fg4[0]}
    v_add_f32 {c.fg4[3]}, 2.0, {c.fg4[1]}
    """)
    for i in range(4): k.e(f"v_mul_f32 {c.P[i]}, {c.fg4[i]}, {c.fl15}")
def sincos4(k, src, scale, cs, sn):
    for i in range(4): k.e(f"v_mul_f32 {sn[i]}, {fl(scale)}, {src[i]}")
    for i in range(4): k.e(f"v_cos_f32 {cs[i]}, {sn[i]}")
    for i in range(4): k.e(f"v_sin_f32 {sn[i]}, {sn[i]}")
def mf16(k, D, A, B, C="0"): k.e(f"v_mfma_f32_16x16x32_bf16 {D}, {A}, {B}, {C}")
def mf32(k, D, A, B, C="0"): k.e(f"v_mfma_f32_32x32x16_bf16 {D}, {A}, {B}, {C}")
def cmul_pack(k, dst, Dr, Di, wr, wi, conj=False):
    t = k.v.alloc(8)
    n = "-" if not conj else ""
    p = "" if not conj else "-"
    for i in range(4): k.e(f"v_mul_f32 {t[i]}, {Dr[i]}, {wr[i]}")
    for i in range(4): k.e(f"v_mul_f32 {t[4+i]}, {Di[i]}, {wr[i]}")
    for i in range(4): k.e(f"v_fma_f32 {t[i]}, {n}{Di[i]}, {wi[i]}, {t[i]}")
    for i in range(4): k.e(f"v_fma_f32 {t[4+i]}, {p}{Dr[i]}, {wi[i]}, {t[4+i]}")
    for i in range(4): k.e(f"v_cvt_pk_bf16_f32 {dst[i]}, {t[i]}, {t[4+i]}")
    k.v.release(t)
def pack4(k, dst, Dr, Di):
    for i in range(4): k.e(f"v_cvt_pk_bf16_f32 {dst[i]}, {Dr[i]}, {Di[i]}")
def k2base_addr(k, dst, ldsbase):
    c = k.c; t = k.v.alloc(); s = k.s.alloc()
    k.e(f"""
    v_sub_u32 {t}, 32, {c.l15}
    v_cmp_eq_u32 vcc, 0, {c.l15}
    v_cndmask_b32 {t}, {t}, 16, vcc
    """.replace(f"v_cndmask_b32 {t}, {t}, 16, vcc", f"v_cndmask_b32_e64 {t}, {t}, 16, vcc"))
    k.e(f"""
    v_cmp_gt_u32 vcc, 2, {c.g}
    v_cndmask_b32 {t}, {t}, {c.l15}, vcc
    v_and_b32 {dst}, 1, {c.g}
    v_lshl_add_u32 {t}, {dst}, 7, {t}
    s_mul_i32 {s}, {c.wv}, 1040
    s_add_u32 {s}, {s}, {ldsbase}
    v_lshl_add_u32 {dst}, {t}, 2, {s}
    """)
    k.v.release(t); k.s.release(s)
def s3_consts(k, Br, Bi, inverse):
    c = k.c
    cs = k.v.alloc(4); sn = k.v.alloc(4); t = k.v.alloc(); u = k.v.alloc()
    sincos4(k, c.P, 1/8, cs, sn)
    k.e(f"""
    v_lshrrev_b32 {t}, 3, {c.l15}
    v_lshrrev_b32 {u}, 1, {c.g}
    v_cmp_eq_u32 vcc, {t}, {u}
    """)
    a, b = ("-","") if inverse else ("","-")
    for i in range(4): k.e(f"v_cvt_pk_bf16_f32 {Br[i]}, {cs[i]}, {a}{sn[i]}")
    for i in range(4): k.e(f"v_cvt_pk_bf16_f32 {Bi[i]}, {b}{sn[i]}, {cs[i]}")
    for i in range(4): k.e(f"v_cndmask_b32 {Br[i]}, 0, {Br[i]}, vcc")
    for i in range(4): k.e(f"v_cndmask_b32 {Bi[i]}, 0, {Bi[i]}, vcc")
    k.v.release(cs, sn, t, u)

def phaseA(k, L_ROW, L_XA):
    c = k.c
    s0 = k.s.alloc(); s1 = k.s.alloc()
    off = k.v.alloc(); gw = k.v.alloc(4); l16 = k.v.alloc()
    k.e(f"""
    s_lshl_b32 {s0}, {c.wv}, 8
    s_add_u32 {s0}, {s0}, {c.slo}
    s_lshl_b32 {s0}, {s0}, 10
    v_lshlrev_b32 {l16}, 4, {c.lane}
    v_add_u32 {off}, {s0}, {l16}
    s_lshl_b32 {s1}, {c.wv}, 10
    s_add_u32 {s1}, {s1}, {L_ROW}
    s_mov_b32 m0, {s1}
    s_waitcnt lgkmcnt(0)
    global_load_lds_dwordx4 {off}, {X}
    global_load_dwordx4 {gw}, {l16}, {GATE}
    """)
    base_consts(k)
    cs = k.v.alloc(4); sn = k.v.alloc(4); t = k.v.alloc(); u = k.v.alloc()
    B1r = k.v.alloc(4); B1i = k.v.alloc(4)
    sincos4(k, c.P, 1/32, cs, sn)
    k.e(f"""
    v_lshlrev_b32 {t}, 31, {c.l15}
    v_lshrrev_b32 {u}, 16, {t}
    v_or_b32 {t}, {t}, {u}
    v_cvt_pk_bf16_f32 {B1r[0]}, {cs[0]}, {cs[1]}
    v_cvt_pk_bf16_f32 {B1r[1]}, {cs[2]}, {cs[3]}
    v_cvt_pk_bf16_f32 {B1i[0]}, -{sn[0]}, -{sn[1]}
    v_cvt_pk_bf16_f32 {B1i[1]}, -{sn[2]}, -{sn[3]}
    s_mov_b32 exec_lo, 0x00010001
    s_mov_b32 exec_hi, 0x00010001
    v_mov_b32 {B1i[0]}, 0xbf803f80
    v_mov_b32 {B1i[1]}, 0xbf803f80
    s_mov_b64 exec, -1
    v_xor_b32 {B1r[2]}, {B1r[0]}, {t}
    v_xor_b32 {B1r[3]}, {B1r[1]}, {t}
    v_xor_b32 {B1i[2]}, {B1i[0]}, {t}
    v_xor_b32 {B1i[3]}, {B1i[1]}, {t}
    """)
    c.twc = k.v.alloc(4); c.tws = k.v.alloc(4)
    sincos4(k, c.P, 1/512, c.twc, c.tws)
    A2r = k.v.alloc(4); A2i = k.v.alloc(4); A2sr = k.v.alloc(4); A2si = k.v.alloc(4); ang = k.v.alloc(4)
    k.e(f"""
    v_cmp_gt_u32 vcc, 8, {c.l15}
    v_sub_f32 {t}, {fl(23.0)}, {c.fl15}
    v_cndmask_b32 {t}, {t}, {c.fl15}, vcc
    """)
    for i in range(4): k.e(f"v_mul_f32 {ang[i]}, {c.fg4[i]}, {t}")
    sincos4(k, ang, 1/16, cs, sn)
    k.e(f"v_mov_b32 {u}, 0x80008000\n v_cndmask_b32_e64 {u}, {u}, 0, vcc")
    for i in range(4): k.e(f"v_cvt_pk_bf16_f32 {A2r[i]}, {cs[i]}, {sn[i]}")
    for i in range(4): k.e(f"v_cvt_pk_bf16_f32 {A2i[i]}, -{sn[i]}, {cs[i]}")
    for i in range(4): k.e(f"v_xor_b32 {A2i[i]}, {A2i[i]}, {u}")
    k.e(f"""
    v_add_f32 {t}, {fl(-7.5)}, {c.fl15}
    v_cndmask_b32 {t}, {t}, {c.fl15}, vcc
    """)
    for i in range(4): k.e(f"v_mul_f32 {ang[i]}, {c.fg4[i]}, {t}")
    sincos4(k, ang, 1/16, cs, sn)
    k.e(f"v_mov_b32 {u}, 0xffff\n v_not_b32 {t}, {u}\n v_cndmask_b32 {u}, {t}, {u}, vcc")
    for i in range(4): k.e(f"v_cvt_pk_bf16_f32 {A2sr[i]}, {cs[i]}, {cs[i]}")
    for i in range(4): k.e(f"v_cvt_pk_bf16_f32 {A2si[i]}, -{sn[i]}, -{sn[i]}")
    for i in range(4): k.e(f"v_and_b32 {A2sr[i]}, {A2sr[i]}, {u}")
    for i in range(4): k.e(f"v_and_b32 {A2si[i]}, {A2si[i]}, {u}")
    k.e("s_mov_b32 exec_lo, 0x00010001\ns_mov_b32 exec_hi, 0x00010001")
    for i in range(4): k.e(f"v_mov_b32 {A2si[i]}, {'0x3f80' if i%2==0 else '0xbf80'}")
    k.e("s_mov_b64 exec, -1")
    k.v.release(cs, sn, ang)
    B3r = k.v.alloc(4); B3i = k.v.alloc(4)
    s3_consts(k, B3r, B3i, False)
    wa = k.v.alloc(); k2base_addr(k, wa, L_XA)
    ra = k.v.alloc()
    k.e(f"""
    v_and_b32 {t}, 1, {c.g}
    v_mul_u32_u24 {ra}, 1040, {t}
    v_lshrrev_b32 {t}, 1, {c.g}
    v_lshl_add_u32 {ra}, {t}, 4, {ra}
    v_add_u32 {ra}, {ra}, {c.l15}
    s_lshl_b32 {s0}, {c.wv}, 7
    s_add_u32 {s0}, {s0}, {L_XA}
    v_lshl_add_u32 {ra}, {ra}, 2, {s0}
    """)
    sa = k.v.alloc()
    k.e(f"""
    v_and_b32 {t}, 7, {c.l15}
    v_lshlrev_b32 {sa}, 10, {t}
    v_lshrrev_b32 {t}, 3, {c.l15}
    v_lshl_add_u32 {sa}, {t}, 6, {sa}
    v_lshl_add_u32 {sa}, {c.g}, 4, {sa}
    s_lshl_b32 {s0}, {c.slo}, 6
    s_add_u32 {s0}, {s0}, {c.wv}
    s_lshl_b32 {s0}, {s0}, 7
    v_add_u32 {sa}, {s0}, {sa}
    v_lshl_add_u32 {t}, {c.lane}, 3, {s1}
    v_add_u32 {u}, {s1}, {l16}
    """)
    A1 = k.v.alloc(4); xr = k.v.alloc(4); Dr = k.v.alloc(4); Di = k.v.alloc(4); Er = k.v.alloc(4); Ei = k.v.alloc(4)
    k.e(f"""
    s_waitcnt vmcnt(1)
    ds_read_b64_tr_b16 {A1[0:2]}, {t}
    ds_read_b64_tr_b16 {A1[2:4]}, {t} offset:512
    ds_read_b128 {xr}, {u}
    s_waitcnt lgkmcnt(1)
    """)
    mf16(k, Dr, A1, B1r); mf16(k, Di, A1, B1i)
    cmul_pack(k, A1, Dr, Di, c.twc, c.tws, conj=True)
    mf16(k, Dr, A2r, A1); mf16(k, Di, A2i, A1); mf16(k, Er, A2sr, A1); mf16(k, Ei, A2si, A1)
    pack4(k, A1, Dr, Di)
    k.e("s_mov_b32 exec_lo, 0x00010001\ns_mov_b32 exec_hi, 0x00010001")
    pack4(k, A1, Er, Ei)
    k.e("s_mov_b64 exec, -1")
    k.e(f"""
    ds_write2_b32 {wa}, {A1[0]}, {A1[1]} offset0:0 offset1:32
    ds_write2_b32 {wa}, {A1[2]}, {A1[3]} offset0:64 offset1:96
    s_waitcnt lgkmcnt(0)
    s_barrier
    """)
    for i in range(4): k.e(f"ds_read_b32 {A1[i]}, {ra} offset:{1040*i}")
    k.e("s_waitcnt lgkmcnt(0)")
    mf16(k, Dr, A1, B3r); mf16(k, Di, A1, B3i)
    pack4(k, A1, Dr, Di)
    k.e(f"global_store_dwordx4 {sa}, {A1}, {WS} {SC}")
    acc = k.v.alloc()
    k.e(f"s_waitcnt vmcnt(1)\n v_mov_b32 {acc}, 0")
    for i in range(4): k.e(f"v_dot2c_f32_bf16 {acc}, {xr[i]}, {gw[i]}")
    k.e("s_nop 2")
    for sh in (8,4,2,1): k.e(f"v_add_f32_dpp {acc}, {acc}, {acc} row_ror:{sh} row_mask:0xf bank_mask:0xf")
    k.e(f"""
    v_add_f32_dpp {acc}, {acc}, {acc} row_bcast:15 row_mask:0xa bank_mask:0xf
    v_add_f32_dpp {acc}, {acc}, {acc} row_bcast:31 row_mask:0xc bank_mask:0xf
    v_mul_f32 {acc}, {fl(-LOG2E)}, {acc}
    v_exp_f32 {acc}, {acc}
    v_add_f32 {acc}, 1.0, {acc}
    v_rcp_f32 {acc}, {acc}
    s_lshl_b32 {s0}, {c.wv}, 8
    s_add_u32 {s0}, {s0}, {c.slo}
    s_lshl_b32 {s0}, {s0}, 2
    s_add_u32 {s0}, {s0}, {WS_G}
    v_mov_b32 {t}, {s0}
    s_mov_b32 exec_lo, 0
    s_mov_b32 exec_hi, 0x80000000
    global_store_dword {t}, {acc}, {WS} {SC}
    s_mov_b64 exec, -1
    """)
    k.v.release(off, gw, l16, t, u, B1r, B1i, A2r, A2i, A2sr, A2si, B3r, B3i, wa, ra, sa, A1, xr, Dr, Di, Er, Ei, acc)
    k.s.release(s0, s1)
def zero_kv(k):
    c = k.c; t = k.v.alloc(); z = k.v.alloc(); s0 = k.s.alloc()
    k.e(f"""
    s_mul_i32 {s0}, s2, 136
    s_add_u32 {s0}, {s0}, {WS_KV}
    v_lshl_add_u32 {t}, v0, 2, {s0}
    v_mov_b32 {z}, 0
    v_cmp_gt_u32 vcc, 34, v0
    s_and_saveexec_b64 s[98:99], vcc
    s_cbranch_execz Lzk_{k.name}
    global_store_dword {t}, {z}, {WS} {SC}
    Lzk_{k.name}:
    s_mov_b64 exec, -1
    """)
    k.v.release(t, z); k.s.release(s0)

def phaseB(k, L_XB, L_W):
    c = k.c
    s0 = k.s.alloc(); s1 = k.s.alloc(); wb = k.s.alloc(2)
    t = k.v.alloc(); u = k.v.alloc(); a = k.v.alloc()
    k.e(f"""
    v_lshrrev_b32 {t}, 3, v0
    v_xor_b32 {t}, {t}, v0
    v_and_b32 {t}, 1, {t}
    v_lshrrev_b32 {u}, 1, v0
    v_lshlrev_b32 {u}, 13, {u}
    v_lshl_add_u32 {a}, {t}, 4, {u}
    s_lshl_b32 {s0}, {c.lam}, 10
    s_lshl_b32 {s1}, {c.gam}, 5
    s_add_u32 {s0}, {s0}, {s1}
    v_add_u32 {a}, {s0}, {a}
    s_lshl_b32 {s0}, {c.wv}, 10
    s_add_u32 m0, {s0}, {L_XB}
    s_waitcnt lgkmcnt(0)
    global_load_lds_dwordx4 {a}, {WS} {SC}
    """)
    k.e(f"""
    v_and_b32 {t}, 255, v0
    v_lshl_add_u32 {t}, {t}, 3, {c.lam}
    v_mul_u32_u24 {t}, 514, {t}
    s_lshl_b32 {s1}, {c.gam}, 4
    v_add_u32 {t}, {s1}, {t}
    s_cmp_lt_u32 {c.wv}, 4
    s_cselect_b64 {wb}, {WR}, {WI}
    s_add_u32 m0, {s0}, {L_W}
    s_nop 0
    global_load_lds_dwordx4 {t}, {wb}
    """)
    sp = k.s.alloc()
    U2 = k.v.alloc(4); Wsp = k.v.alloc(32)
    lab1 = k.lab("nsp1")
    k.e(f"""
    s_or_b32 {sp}, {c.gam}, {c.wv}
    s_cmp_lg_u32 {sp}, 0
    s_cbranch_scc1 {lab1}
    s_sub_u32 {s1}, 8, {c.lam}
    s_and_b32 {s1}, {s1}, 7
    s_lshl_b32 {s1}, {s1}, 10
    v_lshl_add_u32 {t}, {c.g}, 6, {c.l15}
    v_lshl_add_u32 {t}, {t}, 13, {s1}
    """)
    for i in range(4):
        k.e(f"global_load_dword {U2[i]}, {t}, {WS} {SC}\n v_add_u32 {t}, {16*8192}, {t}")
    for i in range(32): k.e(f"v_mov_b32 {Wsp[i]}, 0")
    for r in range(4):
        k.e(f"""
        v_lshl_add_u32 {t}, {c.g}, 6, {c.l15}
        v_add_u32 {t}, {16*r}, {t}
        v_lshl_add_u32 {t}, {t}, 3, {c.lam}
        v_sub_u32 {u}, 2048, {t}
        v_and_b32 {u}, 2047, {u}
        v_mul_u32_u24 {t}, 514, {t}
        v_mul_u32_u24 {u}, 514, {u}
        global_load_short_d16_hi {Wsp[r]}, {t}, {WR}
        global_load_short_d16_hi {Wsp[4+r]}, {t}, {WI}
        global_load_short_d16_hi {Wsp[8+r]}, {u}, {WR}
        global_load_short_d16_hi {Wsp[12+r]}, {u}, {WI}
        global_load_short_d16_hi {Wsp[16+r]}, {t}, {WR} offset:512
        global_load_short_d16_hi {Wsp[20+r]}, {t}, {WI} offset:512
        global_load_short_d16_hi {Wsp[24+r]}, {u}, {WR} offset:512
        global_load_short_d16_hi {Wsp[28+r]}, {u}, {WI} offset:512
        """)
    k.e(f"{lab1}:")
    base_consts(k)
    flam = k.v.alloc(); Q = k.v.alloc(4); cs = k.v.alloc(4); sn = k.v.alloc(4)
    B1r = k.v.alloc(4); B1i = k.v.alloc(4); t1c = k.v.alloc(4); t1s = k.v.alloc(4)
    A2r = k.v.alloc(4); A2i = k.v.alloc(4); B3r = k.v.alloc(4); B3i = k.v.alloc(4)
    t2c = k.v.alloc(4); t2s = k.v.alloc(4); A4r = k.v.alloc(4); A4i = k.v.alloc(4)
    k.e(f"v_cvt_f32_u32 {flam}, {c.lam}\n v_mul_f32 {flam}, {fl(0.125)}, {flam}")
    for i in range(4): k.e(f"v_fma_f32 {Q[i]}, {flam}, {c.fg4[i]}, {c.P[i]}")
    sincos4(k, Q, 1/16, cs, sn)
    for i in range(4): k.e(f"v_cvt_pk_bf16_f32 {B1r[i]}, {cs[i]}, {sn[i]}")
    for i in range(4): k.e(f"v_cvt_pk_bf16_f32 {B1i[i]}, -{sn[i]}, {cs[i]}")
    sincos4(k, Q, 1/256, t1c, t1s)
    sincos4(k, c.P, 1/16, cs, sn)
    for i in range(4): k.e(f"v_cvt_pk_bf16_f32 {A2r[i]}, {cs[i]}, {sn[i]}")
    for i in range(4): k.e(f"v_cvt_pk_bf16_f32 {A2i[i]}, -{sn[i]}, {cs[i]}")
    for i in range(4): k.e(f"v_cvt_pk_bf16_f32 {B3r[i]}, {cs[i]}, -{sn[i]}")
    for i in range(4): k.e(f"v_cvt_pk_bf16_f32 {B3i[i]}, {sn[i]}, {cs[i]}")
    for i in range(4): k.e(f"v_fma_f32 {Q[i]}, {flam}, {c.fl15}, {c.P[i]}")
    sincos4(k, Q, 1/256, t2c, t2s)
    sincos4(k, Q, 1/16, cs, sn)
    for i in range(4): k.e(f"v_cvt_pk_bf16_f32 {A4r[i]}, {cs[i]}, -{sn[i]}")
    for i in range(4): k.e(f"v_cvt_pk_bf16_f32 {A4i[i]}, {sn[i]}, {cs[i]}")
    k.v.release(flam, Q, cs, sn)
    ra = k.v.alloc(); wa = k.v.alloc()
    k.e(f"""
    v_lshl_add_u32 {t}, {c.g}, 6, {c.l15}
    v_bfe_u32 {u}, {c.l15}, 2, 1
    s_lshr_b32 {s1}, {c.wv}, 2
    v_xor_b32 {u}, {s1}, {u}
    v_lshl_add_u32 {u}, {t}, 1, {u}
    s_and_b32 {s1}, {c.wv}, 3
    s_lshl_b32 {s1}, {s1}, 2
    s_add_u32 {s1}, {s1}, {L_XB}
    v_lshl_add_u32 {ra}, {u}, 4, {s1}
    s_lshl_b32 {s1}, {c.wv}, 1
    s_add_u32 {s1}, {s1}, {L_W}
    v_lshl_add_u32 {wa}, {t}, 4, {s1}
    """)
    A = k.v.alloc(4); Dr = k.v.alloc(4); Di = k.v.alloc(4); wr = k.v.alloc(4); wi = k.v.alloc(4)
    for i in range(4): k.e(f"v_mov_b32 {wr[i]}, 0\n v_mov_b32 {wi[i]}, 0")
    k.e("s_waitcnt vmcnt(0)\ns_barrier")
    k.e(f"ds_read2st64_b32 {A[0:2]}, {ra} offset0:0 offset1:2\n ds_read2st64_b32 {A[2:4]}, {ra} offset0:4 offset1:6")
    for i in range(4): k.e(f"ds_read_u16_d16_hi {wr[i]}, {wa} offset:{256*i}")
    for i in range(4): k.e(f"ds_read_u16_d16_hi {wi[i]}, {wa} offset:{4096+256*i}")
    k.e("s_waitcnt lgkmcnt(8)")
    mf16(k, Dr, A, B1r); mf16(k, Di, A, B1i)
    cmul_pack(k, A, Dr, Di, t1c, t1s, conj=True)
    mf16(k, Dr, A2r, A); mf16(k, Di, A2i, A)
    labs = k.lab("sp"); labj = k.lab("spj")
    k.e(f"s_waitcnt lgkmcnt(0)\n s_cmp_eq_u32 {sp}, 0\n s_cbranch_scc1 {labs}")
    cmul_pack(k, A, Dr, Di, wr, wi)
    k.e(f"s_branch {labj}\n{labs}:")
    Cr = k.v.alloc(4); Ci = k.v.alloc(4)
    for i in range(4): k.e(f"v_xor_b32 {U2[i]}, 0x80000000, {U2[i]}")
    mf16(k, Cr, U2, B1r); mf16(k, Ci, U2, B1i)
    cmul_pack(k, U2, Cr, Ci, t1c, t1s, conj=True)
    mf16(k, Cr, A2r, U2); mf16(k, Ci, A2i, U2)
    for r in range(4):
        k.e(f"""
        v_add_f32 {Wsp[r]}, {Wsp[r]}, {Wsp[8+r]}
        v_sub_f32 {Wsp[4+r]}, {Wsp[4+r]}, {Wsp[12+r]}
        v_add_f32 {Wsp[16+r]}, {Wsp[16+r]}, {Wsp[24+r]}
        v_sub_f32 {Wsp[20+r]}, {Wsp[20+r]}, {Wsp[28+r]}
        v_add_f32 {Wsp[8+r]}, {Wsp[r]}, {Wsp[16+r]}
        v_add_f32 {Wsp[12+r]}, {Wsp[4+r]}, {Wsp[20+r]}
        v_sub_f32 {Wsp[24+r]}, {Wsp[r]}, {Wsp[16+r]}
        v_sub_f32 {Wsp[28+r]}, {Wsp[4+r]}, {Wsp[20+r]}
        v_mul_f32 {Wsp[r]}, {Dr[r]}, {Wsp[8+r]}
        v_mul_f32 {Wsp[4+r]}, {Di[r]}, {Wsp[8+r]}
        v_fma_f32 {Wsp[r]}, -{Di[r]}, {Wsp[12+r]}, {Wsp[r]}
        v_fma_f32 {Wsp[4+r]}, {Dr[r]}, {Wsp[12+r]}, {Wsp[4+r]}
        v_fma_f32 {Wsp[r]}, {Cr[r]}, {Wsp[24+r]}, {Wsp[r]}
        v_fma_f32 {Wsp[4+r]}, {Ci[r]}, {Wsp[24+r]}, {Wsp[4+r]}
        v_fma_f32 {Wsp[r]}, -{Ci[r]}, {Wsp[28+r]}, {Wsp[r]}
        v_fma_f32 {Wsp[4+r]}, {Cr[r]}, {Wsp[28+r]}, {Wsp[4+r]}
        v_mul_f32 {Wsp[r]}, {fl(0.25)}, {Wsp[r]}
        v_mul_f32 {Wsp[4+r]}, {fl(0.25)}, {Wsp[4+r]}
        v_cvt_pk_bf16_f32 {A[r]}, {Wsp[r]}, {Wsp[4+r]}
        """)
    k.e(f"{labj}:")
    mf16(k, Dr, A, B3r); mf16(k, Di, A, B3i)
    cmul_pack(k, A, Dr, Di, t2c, t2s)
    mf16(k, Dr, A4r, A); mf16(k, Di, A4i, A)
    pack4(k, A, Dr, Di)
    k.e(f"""
    ds_write2st64_b32 {ra}, {A[0]}, {A[1]} offset0:0 offset1:2
    ds_write2st64_b32 {ra}, {A[2]}, {A[3]} offset0:4 offset1:6
    v_lshlrev_b32 {t}, 4, v0
    s_lshl_b32 {s0}, s2, 13
    s_add_u32 {s0}, {s0}, {WS_X2}
    v_add_u32 {u}, {s0}, {t}
    s_waitcnt lgkmcnt(0)
    s_barrier
    ds_read_b128 {A}, {t} offset:{L_XB}
    s_waitcnt lgkmcnt(0)
    global_store_dwordx4 {u}, {A}, {WS} {SC}
    """)
    k.v.release(t,u,a,U2,Wsp,B1r,B1i,t1c,t1s,A2r,A2i,B3r,B3i,t2c,t2s,A4r,A4i,ra,wa,A,Dr,Di,wr,wi,Cr,Ci)
    k.s.release(s0,s1,wb,sp)

def phaseC(k, L_XC, L_XD, standalone=True):
    c = k.c
    s0 = k.s.alloc(); s1 = k.s.alloc(); sg = k.s.alloc()
    t = k.v.alloc(); u = k.v.alloc(); a = k.v.alloc()
    k.e(f"""
    v_lshrrev_b32 {t}, 3, {c.lane}
    v_and_b32 {u}, 4, {t}
    v_xor_b32 {u}, {u}, {c.lane}
    v_bfe_u32 {a}, {u}, 1, 2
    v_lshl_add_u32 {t}, {a}, 3, {t}
    s_bfe_u32 {s1}, {c.slo}, 0x10002
    v_xor_b32 {u}, {s1}, {u}
    v_and_b32 {u}, 1, {u}
    v_lshlrev_b32 {u}, 4, {u}
    v_lshl_add_u32 {a}, {t}, 13, {u}
    s_lshl_b32 {s0}, {c.wv}, 18
    s_lshl_b32 {s1}, {c.slo}, 5
    s_add_u32 {s0}, {s0}, {s1}
    s_add_u32 {s0}, {s0}, {WS_X2}
    v_add_u32 {a}, {s0}, {a}
    s_lshl_b32 {s0}, {c.wv}, 10
    s_add_u32 {s0}, {s0}, {L_XC}
    s_mov_b32 m0, {s0}
    s_waitcnt lgkmcnt(0)
    global_load_lds_dwordx4 {a}, {WS} {SC}
    """)
    if standalone:
        k.e(f"""
        s_lshl_b32 {s1}, {c.wv}, 8
        s_add_u32 {s1}, {s1}, {c.slo}
        s_lshl_b32 {s1}, {s1}, 2
        s_add_u32 {s1}, {s1}, {WS_G}
        s_load_dword {sg}, s[22:23], {s1}
        """)
        base_consts(k)
        c.twc = k.v.alloc(4); c.tws = k.v.alloc(4)
        sincos4(k, c.P, 1/512, c.twc, c.tws)
    B3r = k.v.alloc(4); B3i = k.v.alloc(4)
    s3_consts(k, B3r, B3i, True)
    cs = k.v.alloc(4); sn = k.v.alloc(4); ang = k.v.alloc(4)
    B2r = k.v.alloc(4); B2i = k.v.alloc(4); Bsr = k.v.alloc(4); Bsi = k.v.alloc(4); B1a = k.v.alloc(4); B1b = k.v.alloc(4)
    k.e(f"v_cmp_gt_u32 vcc, 2, {c.g}\n v_mul_f32 {t}, {fl(23.0)}, {c.fl15}")
    for i in range(4): k.e(f"v_sub_f32 {ang[i]}, {t}, {c.P[i]}")
    for i in range(4): k.e(f"v_cndmask_b32 {ang[i]}, {ang[i]}, {c.P[i]}, vcc")
    sincos4(k, ang, 1/16, cs, sn)
    k.e(f"v_bfrev_b32 {u}, 1\n v_cndmask_b32_e64 {u}, {u}, 0, vcc")
    for i in range(4): k.e(f"v_cvt_pk_bf16_f32 {B2r[i]}, {cs[i]}, -{sn[i]}")
    for i in range(4): k.e(f"v_cvt_pk_bf16_f32 {B2i[i]}, {sn[i]}, {cs[i]}")
    for i in range(4): k.e(f"v_cndmask_b32 {Bsr[i]}, 0, {B2r[i]}, vcc")
    for i in range(4): k.e(f"v_xor_b32 {B2r[i]}, {B2r[i]}, {u}")
    for i in range(4): k.e(f"v_xor_b32 {B2i[i]}, {B2i[i]}, {u}")
    k.e(f"v_mul_f32 {t}, {fl(-7.5)}, {c.fl15}")
    for i in range(4): k.e(f"v_add_f32 {ang[i]}, {t}, {c.P[i]}")
    sincos4(k, ang, 1/16, cs, sn)
    for i in range(4): k.e(f"v_cvt_pk_bf16_f32 {Bsi[i]}, {cs[i]}, -{sn[i]}")
    for i in range(4): k.e(f"v_cndmask_b32_e64 {Bsi[i]}, {Bsi[i]}, 0, vcc")
    sincos4(k, c.P, 1/16, cs, sn)
    for i in range(4): k.e(f"v_cvt_pk_bf16_f32 {B1a[i]}, {cs[i]}, -{sn[i]}")
    for i in range(4): k.e(f"v_fma_f32 {ang[i]}, 0.5, {c.fg4[i]}, {c.P[i]}")
    sincos4(k, ang, 1/16, cs, sn)
    for i in range(4): k.e(f"v_cvt_pk_bf16_f32 {B1b[i]}, {cs[i]}, -{sn[i]}")
    k.e(f"""
    v_lshlrev_b32 {t}, 31, {c.l15}
    s_mov_b64 exec, 0xffff
    v_or_b32 {Bsr[0]}, 0x3f003f00, {t}
    v_mov_b32 {B1a[0]}, 0x3f803f80
    v_mov_b32 {B1b[0]}, 0xbf803f80
    s_mov_b64 exec, -1
    """)
    k.v.release(cs, sn, ang)
    ra = k.v.alloc(); wa = k.v.alloc(); ra2 = k.v.alloc(); sa = k.v.alloc()
    k.e(f"""
    v_lshrrev_b32 {t}, 1, {c.g}
    v_xor_b32 {t}, {t}, {c.g}
    v_and_b32 {t}, 1, {t}
    v_lshl_add_u32 {t}, {t}, 4, {c.l15}
    v_and_b32 {u}, 1, {c.g}
    v_lshl_add_u32 {t}, {u}, 7, {t}
    v_lshl_add_u32 {ra}, {t}, 2, {s0}
    v_and_b32 {t}, 7, {c.l15}
    v_mul_u32_u24 {wa}, 1040, {t}
    v_lshrrev_b32 {t}, 3, {c.l15}
    v_lshl_add_u32 {wa}, {t}, 6, {wa}
    v_lshl_add_u32 {wa}, {c.g}, 4, {wa}
    s_lshl_b32 {s1}, {c.wv}, 7
    s_add_u32 {s1}, {s1}, {L_XD}
    v_add_u32 {wa}, {s1}, {wa}
    """)
    k2base_addr(k, ra2, L_XD)
    k.e(f"""
    v_lshlrev_b32 {sa}, 6, {c.l15}
    v_lshl_add_u32 {sa}, {u}, 5, {sa}
    v_lshrrev_b32 {t}, 1, {c.g}
    v_lshl_add_u32 {sa}, {t}, 4, {sa}
    s_lshl_b32 {s1}, {c.wv}, 8
    s_add_u32 {s1}, {s1}, {c.slo}
    s_lshl_b32 {s1}, {s1}, 10
    s_add_u32 {s1}, {s1}, {WS_X3}
    v_add_u32 {sa}, {s1}, {sa}
    """)
    A = k.v.alloc(4); Dr = k.v.alloc(4); Di = k.v.alloc(4); Er = k.v.alloc(4); Ei = k.v.alloc(4); sc = k.v.alloc()
    k.e(f"""
    s_waitcnt vmcnt(0) lgkmcnt(0)
    ds_read2_b32 {A[0:2]}, {ra} offset0:0 offset1:32
    ds_read2_b32 {A[2:4]}, {ra} offset0:64 offset1:96
    v_mov_b32 {sc}, {sg}
    v_mul_f32 {sc}, {fl(2.0/(2048*512))}, {sc}
    s_waitcnt lgkmcnt(0)
    """)
    mf16(k, Dr, A, B3r); mf16(k, Di, A, B3i)
    pack4(k, A, Dr, Di)
    k.e(f"""
    ds_write_b128 {wa}, {A}
    s_waitcnt lgkmcnt(0)
    s_barrier
    ds_read2_b32 {A[0:2]}, {ra2} offset0:0 offset1:32
    ds_read2_b32 {A[2:4]}, {ra2} offset0:64 offset1:96
    s_waitcnt lgkmcnt(0)
    """)
    mf16(k, Dr, A, B2r); mf16(k, Di, A, B2i); mf16(k, Er, A, Bsr); mf16(k, Ei, A, Bsi)
    k.e(f"""
    s_mov_b64 exec, 0xffff
    v_mov_b32 {Dr[0]}, {Er[0]}
    v_mov_b32 {Di[0]}, {Ei[0]}
    s_mov_b64 exec, -1
    """)
    cmul_pack(k, A, Dr, Di, c.twc, c.tws)
    mf16(k, Dr, A, B1a); mf16(k, Di, A, B1b)
    for i in range(4): k.e(f"v_mul_f32 {Dr[i]}, {Dr[i]}, {sc}")
    for i in range(4): k.e(f"v_mul_f32 {Di[i]}, {Di[i]}, {sc}")
    k.e(f"""
    v_cvt_pk_bf16_f32 {A[0]}, {Dr[0]}, {Dr[1]}
    v_cvt_pk_bf16_f32 {A[1]}, {Dr[2]}, {Dr[3]}
    v_cvt_pk_bf16_f32 {A[2]}, {Di[0]}, {Di[1]}
    v_cvt_pk_bf16_f32 {A[3]}, {Di[2]}, {Di[3]}
    v_permlane16_swap_b32 {A[0]}, {A[2]}
    v_permlane16_swap_b32 {A[1]}, {A[3]}
    global_store_dwordx4 {sa}, {A}, {WS} {SC}
    """)
    k.v.release(t,u,a,B3r,B3i,B2r,B2i,Bsr,Bsi,B1a,B1b,ra,wa,ra2,sa,A,Dr,Di,Er,Ei,sc)
    k.s.release(s0,s1,sg)

def build_fft_only():
    ks = []
    k = K("ka_kernel"); prologue(k); phaseA(k, 0, 8192); zero_kv(k); epilogue(k); ks.append(k)
    k = K("kb_kernel"); prologue(k); phaseB(k, 0, 8192); epilogue(k); ks.append(k)
    k = K("kc_kernel"); prologue(k); phaseC(k, 0, 8192); epilogue(k); ks.append(k)
    return ks
def write(path, ks, lds):
    out = [f"; @launch kernel={k.name} grid=(256,1,1) block=(512,1,1) lds={lds}" for k in ks]
    out.append('.amdgcn_target "amdgcn-amd-amdhsa--gfx950"\n.text')
    out += [k.text() for k in ks]
    open(path,"w").write("\n".join(out))
if __name__ == "__main__":
    write("fft1.s", build_fft_only(), 32768)
```

```python
from gen1 import *

class VM:
    def __init__(s,k): s.k=k; s.n=0
    def issue(s): s.n+=1; return s.n
    def wait(s, tag, extra=""):
        N = s.n-tag
        assert N < 64
        s.k.e(f"s_waitcnt vmcnt({N}) {extra}".strip())

class Win:
    def __init__(s,k,base,nwin):
        s.r=[base]
        for w in range(1,nwin):
            r=k.v.alloc(); k.e(f"v_add_u32 {r}, {w*65536}, {base}"); s.r.append(r)
    def at(s,off): return f"{s.r[off>>16]} offset:{off&65535}"
    def free(s,k): k.v.release(*s.r)

def srd(k, ptr_lo, nbytes):
    r = k.s.alloc(4)
    k.e(f"s_mov_b32 {r[0]}, s{ptr_lo}\ns_mov_b32 {r[1]}, s{ptr_lo+1}\ns_mov_b32 {r[2]}, {nbytes}\ns_mov_b32 {r[3]}, 0x20000")
    return r
def phi(k, regs):
    t = k.v.alloc(len(regs))
    for i,r in enumerate(regs): k.e(f"v_mul_f32 {t[i]}, {fl(LOG2E)}, {r}")
    for i,r in enumerate(regs): k.e(f"v_exp_f32_e64 {t[i]}, {t[i]} clamp")
    for i,r in enumerate(regs): k.e(f"v_max_f32 {r}, 0, {r}")
    for i,r in enumerate(regs): k.e(f"v_add_f32 {t[i]}, {fl(1e-6)}, {t[i]}")
    for i,r in enumerate(regs): k.e(f"v_add_f32 {r}, {r}, {t[i]}")
    k.v.release(t)

def gemm(k, NU=18):
    c = k.c; vm = VM(k)
    s0 = k.s.alloc(); s1 = k.s.alloc(); rot = k.s.alloc(); wvk = k.s.alloc()
    t = k.v.alloc(); u = k.v.alloc(); xo = k.v.alloc(); wo_ = k.v.alloc()
    k.e(f"""
    s_lshr_b32 {s0}, {c.gam}, 2
    s_and_b32 {s1}, {c.gam}, 3
    s_lshl_b32 {s1}, {s1}, 1
    s_add_u32 {rot}, {s0}, {s1}
    s_lshl_b32 {wvk}, {c.wv}, 10
    s_and_b32 {s0}, {c.wv}, 1
    s_lshl_b32 {s1}, {s0}, 2
    v_add_u32 {t}, {s1}, {c.g}
    v_xor_b32 {t}, {t}, {c.lane}
    v_and_b32 {t}, 7, {t}
    v_lshrrev_b32 {u}, 3, {c.lane}
    v_lshlrev_b32 {xo}, 10, {u}
    v_lshl_add_u32 {xo}, {t}, 4, {xo}
    s_lshl_b32 {s1}, {c.wv}, 5
    s_add_u32 {s1}, {s1}, {c.rt}
    s_lshl_b32 {s1}, {s1}, 13
    v_add_u32 {xo}, {s1}, {xo}
    v_and_b32 {t}, 1, {c.g}
    v_lshlrev_b32 {t}, 1, {t}
    s_lshl_b32 {s0}, {s0}, 2
    v_or_b32 {t}, {s0}, {t}
    v_xor_b32 {t}, {t}, {c.lane}
    v_and_b32 {t}, 7, {t}
    v_mul_u32_u24 {wo_}, 3072, {u}
    v_lshl_add_u32 {wo_}, {t}, 4, {wo_}
    s_mul_i32 {s1}, {c.wv}, {8*3072}
    s_lshl_b32 {s0}, {c.ct}, 7
    s_add_u32 {s1}, {s1}, {s0}
    v_add_u32 {wo_}, {s1}, {wo_}
    s_waitcnt lgkmcnt(0)
    """)
    sx = srd(k, 4, 2048*1024); sw = srd(k, 12, 512*3072)
    units = []
    for cc in range(8): units += [("x",cc),("k",cc),("v",cc)]
    for cc in range(8): units += [("q",cc)]
    tags = {}; slot = {}
    st = {"n":0}
    def issue(n):
        for _ in range(n):
            i = st["n"]
            if i >= len(units): return
            kind, cc = units[i]; st["n"] += 1
            slot[(kind,cc)] = (i % NU)*8192
            k.e(f"s_add_u32 {s0}, {rot}, {cc}\n s_and_b32 {s0}, {s0}, 7\n s_add_u32 m0, {wvk}, {(i%NU)*8192}")
            if kind == "x":
                k.e(f"s_lshl_b32 {s0}, {s0}, 7\n buffer_load_dwordx4 {xo}, {sx}, {s0} offen lds")
            else:
                part = {"q":0,"k":1,"v":2}[kind]
                k.e(f"s_mul_i32 {s0}, {s0}, {64*3072}")
                if part: k.e(f"s_add_u32 {s0}, {s0}, {part*1024}")
                k.e(f"buffer_load_dwordx4 {wo_}, {sw}, {s0} offen lds")
            tags[(kind,cc)] = vm.issue()
    issue(NU)
    a00 = k.v.alloc(); a01 = k.v.alloc(); a10 = k.v.alloc(); a11 = k.v.alloc(); b0 = k.v.alloc(); q0 = k.v.alloc(); q1 = k.v.alloc()
    hd = k.s.alloc(); blk0 = k.s.alloc()
    k.e(f"""
    s_and_b32 {hd}, {c.wv}, 3
    s_lshr_b32 {blk0}, {c.wv}, 2
    s_lshl_b32 {blk0}, {blk0}, 1
    s_and_b32 {s0}, {c.wv}, 1
    s_add_u32 {blk0}, {blk0}, {s0}
    v_lshrrev_b32 {t}, 1, {c.l15}
    v_xor_b32 {t}, {t}, {c.g}
    v_lshlrev_b32 {t}, 4, {t}
    v_lshl_add_u32 {t}, {c.l15}, 7, {t}
    s_lshl_b32 {s0}, {blk0}, 11
    v_add_u32 {a00}, {s0}, {t}
    v_xor_b32 {a01}, 64, {a00}
    v_xor_b32 {a10}, 0x800, {a00}
    v_xor_b32 {a11}, 0x840, {a00}
    v_and_b32 {t}, 1, {c.g}
    v_lshrrev_b32 {u}, 3, {c.l15}
    v_lshl_or_b32 {t}, {t}, 1, {u}
    v_xor_b32 {t}, {hd}, {t}
    v_lshlrev_b32 {t}, 5, {t}
    v_and_b32 {u}, 3, {c.l15}
    v_lshl_add_u32 {t}, {u}, 3, {t}
    v_lshrrev_b32 {u}, 2, {c.l15}
    v_lshl_add_u32 {u}, {c.g}, 3, {u}
    v_lshl_add_u32 {b0}, {u}, 7, {t}
    s_and_b32 {s0}, {hd}, 1
    s_lshl_b32 {s0}, {s0}, 5
    v_xor_b32 {q0}, {s0}, {b0}
    v_xor_b32 {q1}, 32, {q0}
    """)
    W = [Win(k,r,3) for r in (a00,a01,a10,a11,b0,q0,q1)]
    Wa = [[W[0],W[1]],[W[2],W[3]]]; Wb = W[4]; Wq = [W[5],W[6]]
    AK = k.v.alloc(64, 4); A1 = k.v.alloc(8,4); BK = k.v.alloc(8,4); BV = k.v.alloc(8,4)
    ak = k.v.alloc(8,4); av = k.v.alloc(8,4)
    for cc in range(8):
        vm.wait(tags[("v",cc)], "lgkmcnt(0)" if cc else "")
        k.e("s_barrier")
        if cc >= 1: issue(3)
        for stp in range(2):
            k.e(f"ds_read_b128 {AK[8*cc+4*stp:8*cc+4*stp+4]}, {Wa[0][stp].at(slot[('x',cc)])}")
            for hh in range(2): k.e(f"ds_read_b64_tr_b16 {BK[4*stp+2*hh:4*stp+2*hh+2]}, {Wb.at(slot[('k',cc)]+stp*4096+hh*512)}")
            for hh in range(2): k.e(f"ds_read_b64_tr_b16 {BV[4*stp+2*hh:4*stp+2*hh+2]}, {Wb.at(slot[('v',cc)]+stp*4096+hh*512)}")
            k.e(f"ds_read_b128 {A1[4*stp:4*stp+4]}, {Wa[1][stp].at(slot[('x',cc)])}")
        for stp in range(2):
            first = cc==0 and stp==0
            A0 = AK[8*cc+4*stp:8*cc+4*stp+4]; A1s = A1[4*stp:4*stp+4]; bk = BK[4*stp:4*stp+4]; bv = BV[4*stp:4*stp+4]
            base = 6 if stp==0 else 0
            k.e(f"s_waitcnt lgkmcnt({base+3})"); mf16(k, ak[0:4], A0, bk, "0" if first else ak[0:4])
            k.e(f"s_waitcnt lgkmcnt({base+1})"); mf16(k, av[0:4], A0, bv, "0" if first else av[0:4])
            k.e(f"s_waitcnt lgkmcnt({base})"); mf16(k, ak[4:8], A1s, bk, "0" if first else ak[4:8]); mf16(k, av[4:8], A1s, bv, "0" if first else av[4:8])
    phi(k, [ak[i] for i in range(8)])
    for i in range(4): k.e(f"v_cvt_pk_bf16_f32 {BK[i]}, {ak[2*i]}, {ak[2*i+1]}")
    for i in range(4): k.e(f"v_cvt_pk_bf16_f32 {BV[i]}, {av[2*i]}, {av[2*i+1]}")
    for i in range(4): k.e(f"v_mov_b32 {A1[i]}, 0x3f803f80")
    mf16(k, ak[0:4], BV[0:4], BK[0:4]); mf16(k, ak[4:8], A1[0:4], BK[0:4])
    k.e(f"""
    s_lshl_b32 {s0}, {c.ct}, 2
    s_add_u32 {s0}, {s0}, {hd}
    s_mul_i32 {s0}, {s0}, 1088
    s_add_u32 {s0}, {s0}, {WS_KV}
    v_lshl_add_u32 {t}, {c.lane}, 2, {s0}
    """)
    for r in range(4):
        k.e(f"global_atomic_add_f32 {t}, {ak[r]}, {WS} offset:{256*r}"); vm.issue()
    k.e(f"s_mov_b64 exec, 0xffff\n global_atomic_add_f32 {t}, {ak[4]}, {WS} offset:1024\n s_mov_b64 exec, -1"); vm.issue()
    vm.wait(tags[("q",7)])
    k.e("s_barrier")
    aq = av
    Bq = [BK, BV]
    def rd(n):
        cc, stp = n//2, n%2
        for h in range(2):
            for hh in range(2): k.e(f"ds_read_b64_tr_b16 {Bq[n%2][4*h+2*hh:4*h+2*hh+2]}, {Wq[h].at(slot[('q',cc)]+stp*4096+hh*512)}")
    rd(0)
    for n in range(16):
        if n+1 < 16: rd(n+1)
        k.e(f"s_waitcnt lgkmcnt({4 if n+1<16 else 0})")
        for h in range(2): mf16(k, aq[4*h:4*h+4], Bq[n%2][4*h:4*h+4], AK[4*n:4*n+4], "0" if n==0 else aq[4*h:4*h+4])
    phi(k, [aq[i] for i in range(8)])
    for i in range(4): k.e(f"v_cvt_pk_bf16_f32 {A1[i]}, {aq[2*i]}, {aq[2*i+1]}")
    k.e(f"""
    s_lshl_b32 {s0}, {c.rt}, 2
    s_add_u32 {s0}, {s0}, {blk0}
    s_lshl_b32 {s0}, {s0}, 3
    s_add_u32 {s0}, {s0}, {c.ct}
    s_lshl_b32 {s0}, {s0}, 1
    s_lshr_b32 {s1}, {hd}, 1
    s_add_u32 {s0}, {s0}, {s1}
    s_lshl_b32 {s0}, {s0}, 10
    s_add_u32 {s0}, {s0}, {WS_PQ}
    v_lshl_add_u32 {t}, {c.lane}, 4, {s0}
    global_store_dwordx4 {t}, {A1[0:4]}, {WS} {SC}
    """)

def final(k, L_WO=0, L_RED=65536):
    c = k.c
    s0 = k.s.alloc(); s1 = k.s.alloc(); rho = k.s.alloc(); kap = k.s.alloc(); wvk = k.s.alloc()
    t = k.v.alloc(); u = k.v.alloc(); wo_ = k.v.alloc(); l31 = k.v.alloc(); h = k.v.alloc()
    k.e(f"""
    s_lshr_b32 {rho}, {c.wv}, 2
    s_and_b32 {kap}, {c.wv}, 3
    s_lshl_b32 {wvk}, {c.wv}, 10
    v_and_b32 {l31}, 31, {c.lane}
    v_lshrrev_b32 {h}, 5, {c.lane}
    v_lshlrev_b32 {t}, 2, {c.g}
    v_xor_b32 {t}, {t}, {c.lane}
    v_and_b32 {t}, 7, {t}
    v_lshrrev_b32 {u}, 3, {c.lane}
    v_lshlrev_b32 {wo_}, 10, {u}
    v_lshl_add_u32 {wo_}, {t}, 4, {wo_}
    s_lshl_b32 {s1}, {c.wv}, 13
    s_lshl_b32 {s0}, {c.ct}, 7
    s_add_u32 {s1}, {s1}, {s0}
    v_add_u32 {wo_}, {s1}, {wo_}
    s_waitcnt lgkmcnt(0)
    """)
    so = srd(k, 14, 512*1024)
    for uu in range(8):
        k.e(f"s_add_u32 m0, {wvk}, {L_WO+uu*8192}\n s_mov_b32 {s0}, {uu*65536}\n buffer_load_dwordx4 {wo_}, {so}, {s0} offen lds")
    PQ = k.v.alloc(32,4); KVr = k.v.alloc(64,4); gg = k.v.alloc(); ga = k.v.alloc(4)
    k.e(f"""
    s_lshl_b32 {s0}, {c.rt}, 1
    s_add_u32 {s0}, {s0}, {rho}
    s_lshl_b32 {s0}, {s0}, 3
    s_add_u32 {s0}, {s0}, {kap}
    s_lshl_b32 {s0}, {s0}, 12
    s_add_u32 {s0}, {s0}, {WS_PQ}
    v_and_b32 {t}, 1, {c.g}
    v_lshlrev_b32 {t}, 14, {t}
    v_lshl_add_u32 {t}, {h}, 9, {t}
    v_lshl_add_u32 {t}, {c.l15}, 4, {t}
    v_add_u32 {t}, {s0}, {t}
    """)
    for hp in range(4):
        k.e(f"global_load_dwordx4 {PQ[8*hp:8*hp+4]}, {t}, {WS} offset:{1024*hp} {SC}")
        k.e(f"global_load_dwordx4 {PQ[8*hp+4:8*hp+8]}, {t}, {WS} offset:{1024*hp+256} {SC}")
    k.e(f"""
    v_and_b32 {t}, 3, {c.l15}
    v_lshrrev_b32 {u}, 2, {c.l15}
    v_lshl_add_u32 {t}, {t}, 2, {u}
    v_cmp_gt_u32 vcc, 16, {l31}
    v_cndmask_b32 {t}, 16, {t}, vcc
    v_lshlrev_b32 {t}, 6, {t}
    v_lshl_add_u32 {t}, {h}, 5, {t}
    s_mul_i32 {s0}, {kap}, {8*1088}
    s_add_u32 {s0}, {s0}, {WS_KV+3*1088}
    v_add_u32 {t}, {s0}, {t}
    v_add_u32 {u}, {4*1088}, {t}
    """)
    for hh in range(8):
        r, o = (t, (hh-3)*1088) if hh < 4 else (u, (hh-7)*1088)
        k.e(f"global_load_dwordx4 {KVr[8*hh:8*hh+4]}, {r}, {WS} offset:{o} {SC}")
        k.e(f"global_load_dwordx4 {KVr[8*hh+4:8*hh+8]}, {r}, {WS} offset:{o+16} {SC}")
    oa = k.v.alloc()
    k.e(f"""
    v_lshrrev_b32 {t}, 3, {l31}
    v_and_b32 {u}, 7, {l31}
    v_lshl_add_u32 {t}, {t}, 8, {u}
    s_lshl_b32 {s0}, {rho}, 7
    s_add_u32 {s0}, {s0}, {c.rt}
    s_lshl_b32 {s0}, {s0}, 5
    s_add_u32 {s0}, {s0}, {WS_G}
    v_lshl_add_u32 {t}, {t}, 2, {s0}
    global_load_dword {gg}, {t}, {WS} {SC}
    v_lshrrev_b32 {t}, 3, {c.lane}
    v_and_b32 {u}, 7, {c.lane}
    v_lshlrev_b32 {u}, 4, {u}
    v_lshl_add_u32 {oa}, {t}, 10, {u}
    s_lshl_b32 {s0}, {c.wv}, 5
    s_add_u32 {s0}, {s0}, {c.rt}
    s_lshl_b32 {s0}, {s0}, 6
    s_add_u32 {s0}, {s0}, {c.ct}
    s_lshl_b32 {s0}, {s0}, 7
    v_add_u32 {oa}, {s0}, {oa}
    v_add_u32 {t}, {WS_X3}, {oa}
    global_load_dwordx4 {ga}, {t}, {WS} {SC}
    """)
    w0 = k.v.alloc(); w1 = k.v.alloc()
    k.e(f"""
    v_lshrrev_b32 {t}, 2, {c.l15}
    v_lshl_add_u32 {t}, {h}, 2, {t}
    v_lshlrev_b32 {t}, 7, {t}
    v_lshrrev_b32 {u}, 3, {c.l15}
    v_lshl_add_u32 {t}, {u}, 6, {t}
    v_and_b32 {u}, 1, {c.g}
    v_lshl_add_u32 {t}, {u}, 5, {t}
    v_and_b32 {u}, 3, {c.l15}
    v_lshl_add_u32 {t}, {u}, 3, {t}
    s_lshl_b32 {s0}, {kap}, 14
    s_add_u32 {s0}, {s0}, {L_WO}
    v_add_u32 {w0}, {s0}, {t}
    v_xor_b32 {w1}, 64, {w0}
    s_waitcnt vmcnt(0)
    s_barrier
    """)
    WF = k.v.alloc(64,4)
    for hh in range(8):
        for cb in range(2):
            for rd in range(2):
                k.e(f"ds_read_b64_tr_b16 {WF[8*hh+4*cb+2*rd:8*hh+4*cb+2*rd+2]}, {(w0,w1)[cb]} offset:{hh*2048+rd*1024}")
    for hp in range(4):
        k.e(f"v_swap_b32 {PQ[8*hp+2]}, {PQ[8*hp+4]}\n v_swap_b32 {PQ[8*hp+3]}, {PQ[8*hp+5]}")
    for hh in range(8):
        for i in range(4): k.e(f"v_cvt_pk_bf16_f32 {KVr[8*hh+i]}, {KVr[8*hh+2*i]}, {KVr[8*hh+2*i+1]}")
    k.e(f"v_sub_f32 {gg}, 1.0, {gg}\n s_waitcnt lgkmcnt(0)")
    N = [k.v.alloc(16,4), k.v.alloc(16,4)]; acc = k.v.alloc(32,4)
    mf32(k, N[0], KVr[0:4], PQ[0:4])
    for hh in range(8):
        if hh+1 < 8: mf32(k, N[(hh+1)%2], KVr[8*hh+8:8*hh+12], PQ[4*hh+4:4*hh+8])
        n = N[hh%2]; O = KVr[8*hh+4:8*hh+8]
        k.e(f"v_add_f32 {n[8]}, {fl(1e-6)}, {n[8]}\n v_rcp_f32 {n[8]}, {n[8]}\n v_mul_f32 {n[8]}, {n[8]}, {gg}")
        for i in range(8): k.e(f"v_mul_f32 {n[i]}, {n[i]}, {n[8]}")
        for i in range(4): k.e(f"v_cvt_pk_bf16_f32 {O[i]}, {n[2*i]}, {n[2*i+1]}")
        for cb in range(2): mf32(k, acc[16*cb:16*cb+16], WF[8*hh+4*cb:8*hh+4*cb+4], O, "0" if hh==0 else acc[16*cb:16*cb+16])
    RS = 272
    k.e(f"""
    v_mul_u32_u24 {t}, {RS}, {l31}
    v_lshl_add_u32 {t}, {h}, 4, {t}
    s_lshl_b32 {s0}, {kap}, 1
    s_add_u32 {s0}, {s0}, {rho}
    s_mul_i32 {s0}, {s0}, {32*RS}
    s_add_u32 {s0}, {s0}, {L_RED}
    v_add_u32 {t}, {s0}, {t}
    """)
    for cb in range(2):
        for q in range(4): k.e(f"ds_write_b128 {t}, {acc[16*cb+4*q:16*cb+4*q+4]} offset:{cb*128+q*32}")
    k.e(f"""
    v_lshrrev_b32 {t}, 3, v0
    v_mul_u32_u24 {t}, {RS}, {t}
    v_and_b32 {u}, 7, v0
    v_lshl_add_u32 {t}, {u}, 5, {t}
    v_add_u32 {t}, {L_RED}, {t}
    s_waitcnt lgkmcnt(0)
    s_barrier
    """)
    for kk in range(4):
        for q in range(2): k.e(f"ds_read_b128 {WF[8*kk+4*q:8*kk+4*q+4]}, {t} offset:{kk*64*RS+q*16}")
    o8 = N[0]
    for i in range(4):
        k.e(f"v_lshlrev_b32 {o8[2*i]}, 16, {ga[i]}\n v_and_b32 {o8[2*i+1]}, 0xffff0000, {ga[i]}")
    for kk in range(4):
        k.e(f"s_waitcnt lgkmcnt({6-2*kk})")
        for i in range(8): k.e(f"v_add_f32 {o8[i]}, {o8[i]}, {WF[8*kk+i]}")
    for i in range(4): k.e(f"v_cvt_pk_bf16_f32 {ga[i]}, {o8[2*i]}, {o8[2*i+1]}")
    k.e(f"global_store_dwordx4 {oa}, {ga}, {OUT}")

if __name__ == "__main__":
    ks = build_fft_only()
    k = K("kg_kernel"); prologue(k); gemm(k); epilogue(k); ks.append(k)
    k = K("kf_kernel"); prologue(k); final(k); epilogue(k); ks.append(k)
    write("v1.s", ks, 160*1024)
    for k in ks: print(k.name, "vgprs", k.v.hw, "lines", len(k.L))
```

```python
from gen2 import *
def allk():
    ks = build_fft_only()
    k = K("kg_kernel"); prologue(k); gemm(k); epilogue(k); ks.append(k)
    k = K("kf_kernel"); prologue(k); final(k); epilogue(k); ks.append(k)
    return ks
def empty(n):
    k = K(n); k.e("s_endpgm"); return k
ks = allk(); ks.append(empty("e1_kernel")); write("c_e1.s", ks, 160*1024)
ks = allk(); ks += [empty("e1_kernel"), empty("e2_kernel"), empty("e3_kernel")]; write("c_e3.s", ks, 160*1024)
def warm(code, data):
    k = K("w_kernel"); prologue(k); c = k.c
    t = k.v.alloc(); d = k.v.alloc(16); a = k.v.alloc(2)
    k.e(f"s_lshl_b32 s3, {c.gam}, 9\n v_add_u32 {t}, s3, v0\n v_lshlrev_b32 {t}, 7, {t}\n s_waitcnt lgkmcnt(0)")
    if data:
        for i,(lo,n) in enumerate([(4,2048*1024),(6,2048*514),(8,2048*514),(12,512*3072),(14,512*1024)]):
            r = srd(k, lo, n)
            k.e(f"buffer_load_dword {d[i]}, {t}, {r}, 0 offen")
    if code:
        k.e(f"""s_getpc_b64 s[90:91]
        v_lshlrev_b32 {t}, 7, v0
        v_cmp_gt_u32 vcc, 200, v0
        s_and_saveexec_b64 s[98:99], vcc
        s_cbranch_execz Lw1
        global_load_dword {d[8]}, {t}, s[90:91]
        Lw1:
        s_mov_b64 exec, -1""")
    k.e("s_waitcnt vmcnt(0)")
    epilogue(k); return k
write("c_wc.s", [warm(1,0)]+allk(), 160*1024)
write("c_wd.s", [warm(0,1)]+allk(), 160*1024)
write("c_wcd.s", [warm(1,1)]+allk(), 160*1024)
```
